```python
import torch

def _softmax(x, axis=-1):
    return torch.softmax(x, dim=axis)
def _gelu(x):
    return torch.nn.functional.gelu(x, approximate="tanh")
def _silu(x):
    return torch.nn.functional.silu(x)
def _sigmoid(x):
    return torch.sigmoid(x)
def _layernorm(x, axis=-1, eps=1e-5):
    m = x.mean(dim=axis, keepdim=True)
    v = x.var(dim=axis, keepdim=True, unbiased=False)
    return (x - m) / torch.sqrt(v + eps)
def _scatter_add(tgt, idx, src, axis=0):
    return tgt.clone().index_add_(axis, idx, src)
def _segment_sum(src, seg, n):
    out = torch.zeros((n,) + src.shape[1:], dtype=src.dtype)
    return out.index_add_(0, seg, src)
def _pad(x, pw):
    flat = tuple(v for pair in reversed(pw) for v in pair)
    return torch.nn.functional.pad(x, flat)

kernel_name = 'standalone__seq2seq_rnn_t_joint__speech'

def setup_inputs():

    _w = (lambda a: (lambda t: t.to(torch.bfloat16) if t.is_floating_point() else t)(torch.as_tensor(a)))
    B, T, D, K = 2, 16000, 256, 15
    U = 8
    sc = (1.0 / (K * D)) ** 0.5
    sd = (1.0 / D) ** 0.5
    return {
        "x": _w((lambda *s: torch.randn(*s, dtype=torch.bfloat16) * 0.2)(B, T, D) * 0.5),
        "w1": _w((lambda *s: torch.randn(*s, dtype=torch.bfloat16) * 3.2)(K, D, D) * sc),
        "w2": _w((lambda *s: torch.randn(*s, dtype=torch.bfloat16) * 3.2)(K, D, D) * sc),
        "g": _w((lambda *s: torch.randn(*s, dtype=torch.bfloat16) * 3.2)(B, U, D) * 0.5),
        "w_f": _w((lambda *s: torch.randn(*s, dtype=torch.bfloat16) * 3.2)(D, D) * sd),
        "w_g": _w((lambda *s: torch.randn(*s, dtype=torch.bfloat16) * 3.2)(D, D) * sd),
        "w_o": _w((lambda *s: torch.randn(*s, dtype=torch.bfloat16) * 3.2)(D, D) * sd),
    }

def reference(x, w1, w2, g, w_f, w_g, w_o):
    B, T, D = x.shape
    K = w1.shape[0]
    pad = K // 2
    xp = _pad(x, ((0,0),(pad,pad),(0,0)))
    h = torch.zeros_like(x)
    for i in range(K):
        h = h + torch.einsum("btc,cd->btd", xp[:, i:i+T, :], w1[i])
    h = _gelu(h)[:, ::2, :]
    T1 = h.shape[1]
    hp = _pad(h, ((0,0),(pad,pad),(0,0)))
    f = torch.zeros_like(h)
    for i in range(K):
        f = f + torch.einsum("btc,cd->btd", hp[:, i:i+T1, :], w2[i])
    f = _gelu(f)[:, ::2, :]
    fe = torch.einsum("btd,de->bte", f, w_f)
    ge = torch.einsum("bud,de->bue", g, w_g)
    j = torch.tanh(fe[:, :, None, :] + ge[:, None, :, :])
    return torch.einsum("btud,dv->btuv", j, w_o)
```

```python
KNAME = "standalone__seq2seq_rnn_t_joint__speech_kernel"
def kd(name, vgpr=256, sgpr=102, accum=None, extra=""):
    if accum is None: accum = min(256, (vgpr+3)//4*4)
    return f""".section .rodata,"a"
.p2align 6
.amdhsa_kernel {name}
  .amdhsa_next_free_vgpr {vgpr}
  .amdhsa_next_free_sgpr {sgpr}
  .amdhsa_accum_offset {accum}
  .amdhsa_group_segment_fixed_size 0
  .amdhsa_kernarg_size 80
  .amdhsa_user_sgpr_count 2
  .amdhsa_user_sgpr_kernarg_segment_ptr 1
  .amdhsa_system_sgpr_workgroup_id_x 1
{extra}.end_amdhsa_kernel
"""
HEAD = """.amdgcn_target "amdgcn-amd-amdhsa--gfx950"
.text
"""
def entry(name):
    return f""".text
.globl {name}
.p2align 8
.type {name},@function
{name}:
"""
```

```python
import re
TRANS = ("v_exp_f32", "v_rcp_f32", "v_log_f32", "v_rsq_f32", "v_sqrt_f32")
def regs(tok):
    tok = tok.strip()
    tok = re.sub(r"^-|^abs\(|\)$|^\||\|$", "", tok)
    m = re.fullmatch(r"([vas])(\d+)", tok)
    if m: return {(m.group(1), int(m.group(2)))}
    m = re.fullmatch(r"([vas])\[(\d+):(\d+)\]", tok)
    if m: return {(m.group(1), i) for i in range(int(m.group(2)), int(m.group(3)) + 1)}
    if tok in ("vcc", "m0", "exec"): return {(tok, 0)}
    return set()
def parse(line):
    t = line.split(";")[0].strip()
    if not t or t.endswith(":") or t.startswith("."): return None
    p = t.split(None, 1); op = p[0]
    args = [a.strip() for a in p[1].split(",")] if len(p) > 1 else []
    if args: args[-1:] = args[-1].split()[:1] if not op.startswith("s_waitcnt") else args[-1:]
    W = set(); Rd = set()
    if op.startswith("v_mfma"):
        W = regs(args[0]); Rd = regs(args[1]) | regs(args[2]); C = regs(args[3])
        return dict(op=op, W=W, R=Rd, C=C, k="mfma", n=1, passes=8 if "32x32" in op else 4)
    if op.startswith(("buffer_", "global_")):
        lds = " lds" in t
        if "load" in op and not lds: W = regs(args[0]); Rd = set().union(*[regs(a) for a in args[1:]])
        else: Rd = set().union(*[regs(a) for a in args]) if args else set()
        data = regs(args[0]) if "store" in op else set()
        return dict(op=op, W=W, R=Rd, k="vmem", lds=lds, n=1, data=data)
    if op.startswith("ds_"):
        if "read" in op: W = regs(args[0]); Rd = regs(args[1])
        else: Rd = set().union(*[regs(a) for a in args])
        return dict(op=op, W=W, R=Rd, k="ds", n=1)
    if op.startswith("v_"):
        W = regs(args[0]); Rd = set().union(*[regs(a) for a in args[1:]]) if len(args) > 1 else set()
        if op.startswith("v_permlane"): W |= regs(args[1]); Rd |= regs(args[0])
        if op.startswith(("v_fmac", "v_pk_fmac")): Rd |= W
        return dict(op=op, W=W, R=Rd, k="valu", n=1)
    if op == "s_nop": return dict(op=op, W=set(), R=set(), k="salu", n=int(args[0]) + 1)
    if op.startswith("s_"):
        if op.startswith(("s_cmp", "s_cbranch", "s_branch", "s_waitcnt", "s_barrier", "s_endpgm", "s_sleep", "s_setprio")): W = set(); Rd = set().union(*[regs(a) for a in args]) if args else set()
        else: W = regs(args[0]); Rd = set().union(*[regs(a) for a in args[1:]]) if len(args) > 1 else set()
        return dict(op=op, W=W, R=Rd, k="salu", n=1)
    raise Exception("cannot parse " + line)

def need(p, c):
    n = 0
    if p["k"] == "mfma":
        ov_r = p["W"] & c["R"]; ov_w = p["W"] & c["W"]
        big = 12 if p["passes"] == 8 else 8
        if c["k"] == "mfma":
            if p["W"] & c["R"]: n = max(n, big)
            if p["W"] & c["C"] and p["W"] != c["C"]: n = max(n, big - 2)
            if p["W"] & c["W"] and not (p["W"] & c["C"]): n = max(n, 0)
        elif ov_r or ov_w: n = max(n, big)
        if c["k"] == "valu" and p["C"] & c["W"]: n = max(n, 7 if p["passes"] == 8 else 3)
    if p["k"] == "valu":
        vw = {r for r in p["W"] if r[0] in "va" and r[0] != "vcc"}
        sw = {r for r in p["W"] if r[0] in ("s", "vcc")}
        if c["k"] == "mfma" and vw & (c["R"] | c["C"]): n = max(n, 2)
        if c["k"] == "valu" and c["op"].startswith("v_permlane") and vw & c["R"]: n = max(n, 2)
        if c["k"] == "valu" and "dpp" in c["op"] and vw & c["R"]: n = max(n, 2)
        if c["k"] == "valu" and c["op"].startswith(("v_readfirstlane", "v_readlane")) and vw & c["R"]: n = max(n, 1)
        if p["op"].startswith(TRANS) and c["k"] == "valu" and not c["op"].startswith(TRANS) and vw & c["R"]: n = max(n, 1)
        if c["k"] == "valu" and sw & c["R"]: n = max(n, 2)
        if c["k"] == "vmem" and sw & c["R"]: n = max(n, 5)
        if c["k"] == "salu" and sw & c["R"]: n = max(n, 1)
    if p["k"] == "salu" and ("m0", 0) in p["W"] and c["k"] == "vmem" and c.get("lds"): n = max(n, 1)
    if p["k"] == "vmem" and p.get("data") and ("x4" in p["op"] or "x3" in p["op"]) and p["data"] & c["W"]: n = max(n, 2 if c["k"] == "valu" else 1)
    return n

def fix_and_check(lines, verbose=True):
    out = []; hist = []; labels = {}
    def check(c, hist):
        d = 0; worst = 0
        for p in reversed(hist[-24:]):
            worst = max(worst, need(p, c) - d)
            d += p["n"]
            if d >= 12: break
        return worst
    for ln in lines:
        t = ln.strip()
        if t.endswith(":"): labels[t[:-1]] = len(out)
        c = parse(ln)
        if c is None: out.append(ln); continue
        w = check(c, hist)
        if w > 0:
            if verbose: print(f"hazard: inserting s_nop {w-1} before: {t}")
            out.append(f"    s_nop {w-1}"); hist.append(dict(op="s_nop", W=set(), R=set(), k="salu", n=w))
        out.append(ln); hist.append(c)
        if c["op"].startswith(("s_cbranch", "s_branch")):
            tgt = t.split()[1]
            if tgt in labels:
                h = list(hist)
                for l2 in out[labels[tgt]:labels[tgt] + 30]:
                    c2 = parse(l2)
                    if c2 is None: continue
                    if check(c2, h) > 0: raise Exception(f"hazard across back edge to {tgt}: {l2}")
                    h.append(c2)
        if c["op"] == "s_endpgm": hist = []
    return out
```

```python
class Op:
    __slots__ = ("text", "cls", "prod", "need", "mfma", "slots")
    def __init__(self, text, cls=None, prod=None, need=(), mfma=False, slots=1):
        self.text = text; self.cls = cls; self.prod = prod; self.need = tuple(need); self.mfma = mfma; self.slots = slots

MAXC = {"vm": 63, "lg": 15}
CNAME = {"vm": "vmcnt", "lg": "lgkmcnt"}

def place(mfmas, events, loop=True, cap=2):
    n = len(mfmas)
    gaps = [[] for _ in range(n)]
    load = [0] * n
    pre = []
    evs = []
    for k, (p, op) in enumerate(events):
        if loop: p %= n
        evs.append((p, k, op))
    evs.sort(key=lambda e: (e[0], e[1]))
    last = -1
    final_pos = {}
    for p, k, op in evs:
        ops = op if isinstance(op, list) else [op]
        if p < 0:
            pre += ops; final_pos[k] = p; continue
        q = max(p, last)
        need = sum(o.slots for o in ops)
        while q < n - 1 and load[q] + need > cap and load[q] > 0:
            q += 1
        q = min(q, n - 1)
        gaps[q] += ops; load[q] += need; last = q; final_pos[k] = q
    out = list(pre)
    for i, m in enumerate(mfmas):
        out.append(m); out += gaps[i]
    return out, final_pos

def insert_waits(body, loop=True, entry_done=True):
    cls_of = {}
    for op in body:
        if op.prod is not None:
            assert op.cls in MAXC, op.text
            cls_of[op.prod] = op.cls
    seq = body * 2 if loop else body
    start = len(body) if loop else 0
    cnt = {"vm": 0, "lg": 0}
    last_idx = {}
    done = {"vm": -1, "lg": -1}
    out = []
    for i, op in enumerate(seq):
        if loop and i == start:
            done = {"vm": -1, "lg": -1}
        w = {}
        for t in op.need:
            if t not in last_idx:
                if loop and i >= start: raise Exception(f"token {t} has no producer")
                continue
            c = cls_of[t]; idx = last_idx[t]
            if idx > done[c]:
                n = cnt[c] - idx - 1
                w[c] = min(w.get(c, 99), n)
        if w:
            parts = []
            for c, n in w.items():
                n = min(n, MAXC[c]); done[c] = cnt[c] - n - 1
                parts.append(f"{CNAME[c]}({n})")
            if i >= start: out.append("s_waitcnt " + " ".join(parts))
        if i >= start: out.append(op.text)
        if op.cls:
            if op.prod is not None: last_idx[op.prod] = cnt[op.cls]
            cnt[op.cls] += 1
    return out

def ring_alloc(intervals, n, nbuf):
    import random
    def cells(k):
        s, e = intervals[k]
        m = 0
        for x in range(s + 1, e + 1): m |= 1 << (x % n if n else x + 1000)
        return m
    cs = {k: cells(k) for k in intervals}
    mx = max(sum((c >> x) & 1 for c in cs.values()) for x in range(n if n else 4000))
    if mx > nbuf: raise Exception(f"ring needs at least {mx} buffers")
    rnd = random.Random(1)
    for cut in range(0, n if n else 1):
        keys = sorted(intervals, key=lambda k: ((intervals[k][0] - cut) % n, repr(k)) if n else intervals[k][0])
        cross = [k for k in keys if n and (intervals[k][0] - cut) % n + (intervals[k][1] - intervals[k][0]) >= n]
        keys = cross + [k for k in keys if k not in cross]
        for trial in range(60):
            used = [0] * nbuf; assign = {}; ok = True
            for k in keys:
                free = [b for b in range(nbuf) if not used[b] & cs[k]]
                if not free: ok = False; break
                b = free[0] if trial == 0 else rnd.choice(free)
                used[b] |= cs[k]; assign[k] = b
            if ok: return assign
    raise Exception(f"ring allocation failed with {nbuf} buffers (max overlap {mx})")
```

```python
import struct, sys
from sched import Op, place, insert_waits, ring_alloc
from gen_common import kd, HEAD, entry

H_OFF   = 0
W2S_OFF = 0x800000
F_OFF   = 0xA00000
WFS_OFF = 0xE00000
WOS_OFF = 0xE20000
GE_OFF  = 0xE40000
STAMP_OFF = 0x1000000

def f2u(x): return struct.unpack("<I", struct.pack("<f", x))[0]
LOG2E = 1.4426950408889634
K0 = 0.7978845608028654
GC0 = -2 * K0 * LOG2E
GC1 = GC0 * 0.044715

def rng(p, a, n): return f"{p}[{a}:{a+n-1}]"
def v4(a): return f"v[{a}:{a+3}]"
def v2(a): return f"v[{a}:{a+1}]"

class Asm:
    def __init__(self): self.l = []
    def __call__(self, s):
        for x in s.split("\n"):
            x = x.strip()
            if x: self.l.append(x if x.endswith(":") or x.startswith(".") else "    " + x)
    def text(self): return "\n".join(self.l) + "\n"

def ids(A):
    A("""s_and_b32 s33, s2, 7
    s_lshr_b32 s34, s2, 3
    s_and_b32 s35, s34, 3
    s_lshr_b32 s34, s34, 2
    s_lshl_b32 s33, s33, 3
    s_add_u32 s36, s33, s34
    s_lshr_b32 s37, s36, 5
    s_and_b32 s38, s36, 31
    v_lshrrev_b32 v1, 6, v0
    v_and_b32 v0, 63, v0
    v_readfirstlane_b32 s32, v1""")

def stamp(A, i, on):
    if on: A(f"s_memtime s[{64+2*i}:{65+2*i}]")

def stamp_store(A, n, on, kidx):
    if not on: return
    A("s_memrealtime s[62:63]\ns_waitcnt lgkmcnt(0)")
    A(f"s_load_dwordx2 s[88:89], s[0:1], 72\ns_waitcnt lgkmcnt(0)")
    A(f"s_add_u32 s88, s88, {STAMP_OFF + kidx*0x40000}\ns_addc_u32 s89, s89, 0\ns_mov_b32 s90, 0x40000\ns_mov_b32 s91, 0x20000")
    A("s_lshl_b32 s92, s2, 2\ns_add_u32 s92, s92, s32\ns_lshl_b32 s92, s92, 6")
    A("v_mov_b32 v1, 0")
    for i in range(n):
        if i: A(f"s_sub_u32 s93, s{64+2*i}, s64\nv_mov_b32 v2, s93")
        else: A("v_mov_b32 v2, s60")
        A(f"buffer_store_dword v2, v1, s[88:91], s92 offen offset:{4*i}")
    A(f"s_sub_u32 s93, s62, s60\nv_mov_b32 v2, s93\nbuffer_store_dword v2, v1, s[88:91], s92 offen offset:60")

def gelu_pack(A, accs, tmp, out, sC1, vC0, sOne):
    regs = [(a + 2*h, tmp + 4*k + 2*h) for k, a in enumerate(accs) for h in range(2)]
    for x, t in regs: A(f"v_pk_mul_f32 {v2(t)}, {v2(x)}, {v2(x)}")
    for x, t in regs: A(f"v_pk_fma_f32 {v2(t)}, {v2(t)}, s[{sC1}:{sC1+1}], {v2(vC0)}")
    for x, t in regs: A(f"v_pk_mul_f32 {v2(t)}, {v2(t)}, {v2(x)}")
    for x, t in regs: A(f"v_exp_f32 v{t}, v{t}\nv_exp_f32 v{t+1}, v{t+1}")
    for x, t in regs: A(f"v_pk_add_f32 {v2(t)}, {v2(t)}, s[{sOne}:{sOne+1}]")
    for x, t in regs: A(f"v_rcp_f32 v{t}, v{t}\nv_rcp_f32 v{t+1}, v{t+1}")
    for x, t in regs: A(f"v_pk_mul_f32 {v2(t)}, {v2(t)}, {v2(x)}")
    for k, (x, t) in enumerate(regs): A(f"v_cvt_pk_bf16_f32 v{out+k}, v{t}, v{t+1}")

def gather_voff(A, vdst, vt):
    A(f"""v_lshrrev_b32 v{vt}, 4, v0
    v_lshlrev_b32 v{vdst}, 12, v{vt}
    v_and_b32 v{vt}, 3, v0
    v_lshl_add_u32 v{vdst}, v{vt}, 1, v{vdst}
    v_bfe_u32 v{vt}, v0, 2, 1
    v_lshl_add_u32 v{vdst}, v{vt}, 4, v{vdst}
    v_bfe_u32 v{vt}, v0, 3, 1
    v_lshl_add_u32 v{vdst}, v{vt}, 3, v{vdst}""")

def conv_groups(R, Js):
    S = []; p = 0
    for J in Js: S.append(p); p += R * J
    first = {}; last = {}
    for g, J in enumerate(Js):
        for s in range(R + J - 1):
            first[g, s] = S[g] + (s if s < J else (s - J + 1) * J + J - 1)
            last[g, s] = S[g] + (s * J if s <= R - 1 else (R - 1) * J + s - (R - 1))
    return S, p, first, last

def conv1(A, name, stamps=False):
    AB = [0, 34816]; WB = 69632
    SS = 69632 + 65536
    vACC = 0 + 64
    vW = [128, 160]
    vF = 188 + 4
    NB = 16
    vXD = 2
    vVA = 20
    vWD = 28; vWT = 29
    vSD = 30
    vSL = 31
    vSide = 32
    vC0 = 48
    vST = 50; vST2 = 51
    vT = 52
    A(entry(name))
    A("s_cmp_ge_u32 s2, 256\ns_cbranch_scc1 L1_end")
    if stamps: A("s_memrealtime s[60:61]")
    stamp(A, 0, stamps)
    A("""s_load_dwordx4 s[4:7], s[0:1], 0
    s_load_dwordx2 s[8:9], s[0:1], 16
    s_load_dwordx2 s[10:11], s[0:1], 40
    s_load_dwordx2 s[40:41], s[0:1], 72""")
    ids(A)
    A(f"""s_mul_i32 s42, s38, 500
    s_sub_u32 s42, s42, 7
    s_lshl_b32 s42, s42, 9            ; (500T-7)*512
    s_lshl_b32 s43, s32, 1            ; 2w
    s_lshl_b32 s44, s32, 14           ; w*16384
    s_add_u32 s44, s44, s42
    v_and_b32 v52, 7, v0
    v_xor_b32 v53, s43, v52           ; u = (sigma ^ 2w) & 7
    v_lshrrev_b32 v54, 4, v0          ; l>>4
    v_lshlrev_b32 v55, 11, v54        ; *2048
    v_lshl_add_u32 v53, v53, 4, v55
    v_add_u32 v53, s44, v53           ; V0
    v_bfe_u32 v56, v0, 3, 1
    v_lshl_add_u32 v57, v56, 10, v53  ; Ve
    v_xor_b32 v58, 1, v56
    v_lshl_add_u32 v58, v58, 10, v53  ; Vo
    """)
    for k in range(8):
        kp = k % 4; odd = k // 4
        src = 58 if kp & 1 else 57
        c = kp * 65536 + odd * 8192
        A(f"v_add_u32 v{vXD+k}, {c}, v{src}" if c else f"v_mov_b32 v{vXD+k}, v{src}")
    A(f"""v_lshl_add_u32 v59, v52, 4, v55
    v_lshl_add_u32 v59, v56, 10, v59
    s_add_u32 s45, s42, {32*8192}
    v_add_u32 v{vXD+16}, s45, v59""")
    A(f"""v_lshrrev_b32 v59, 3, v0
    s_lshl_b32 s45, s32, 12           ; 8w*512
    s_lshl_b32 s46, s35, 7            ; nq*128
    s_add_u32 s45, s45, s46
    v_lshlrev_b32 v60, 9, v59
    v_add_u32 v60, s45, v60
    s_and_b32 s46, s32, 1
    s_lshl_b32 s46, s46, 1
    v_and_b32 v61, 1, v54
    v_or_b32 v61, s46, v61            ; G
    v_bfe_u32 v62, v0, 1, 2
    v_xor_b32 v61, v61, v62
    v_lshl_add_u32 v60, v61, 5, v60
    v_and_b32 v61, 1, v0
    v_lshl_add_u32 v{vWD}, v61, 4, v60
    s_lshl_b32 s47, s32, 10           ; w*1024
    s_lshl_b32 s48, s32, 11           ; w*2048
    """)
    A("s_waitcnt lgkmcnt(0)")
    A("""s_mul_i32 s45, s37, 8192000
    s_add_u32 s12, s4, s45
    s_addc_u32 s13, s5, 0
    s_mov_b32 s14, 8192000
    s_mov_b32 s15, 0x20000
    s_mov_b32 s16, s6
    s_mov_b32 s17, s7
    s_mov_b32 s18, 1966080
    s_mov_b32 s19, 0x20000
    s_mov_b32 s50, 0                  ; c*32768 (W k offset)
    s_mov_b32 s51, 0                  ; c*128
    s_mov_b32 s52, 128                ; (c+1)*128
    s_mov_b32 s53, 0                  ; c""")
    stamp(A, 1, stamps)
    def wdma(g, nxt):
        ph, ks = g >> 1, g & 1
        out = []
        for j in range(8 - ph):
            so = (2*j + ph) * 131072 + ks * 16384 + (32768 if nxt else 0)
            out.append([Op(f"s_add_u32 m0, s47, {WB + (g & 1)*32768 + j*4096}"),
                        Op(f"s_add_u32 s54, s50, {so}" if so else "s_mov_b32 s54, s50"),
                        Op(f"buffer_load_dwordx4 v{vWD}, s[16:19], s54 offen lds", "vm", ("WD", g, j))])
        return out
    def xdma(ph, nxt):
        out = []
        so = "s52" if nxt else "s51"
        for k in range(8):
            kp = k % 4; odd = k // 4
            out.append([Op(f"s_add_u32 m0, s48, {AB[ph] + (8*kp + odd)*1024}"),
                        Op(f"buffer_load_dwordx4 v{vXD + 8*ph + k}, s[12:15], {so} offen lds", "vm", ("XD", ph, k))])
        if ph == 0:
            out.append([Op(f"s_mov_b32 m0, {AB[0] + 32768}"),
                        Op(f"buffer_load_dwordx4 v{vXD + 16}, s[12:15], {so} offen lds", "vm", ("XD", ph, 8))])
        return out
    def emit_seq(seq):
        for grp in seq:
            A(grp[0].text)
            if len(grp) == 2: A("s_nop 0")
            for o in grp[1:]: A(o.text)
    xd = xdma(0, False)
    emit_seq(xd[:4]); emit_seq(wdma(0, False)); emit_seq(xd[4:]); emit_seq(wdma(1, False))
    A(f"""s_lshl_b32 s55, s2, 3
    s_lshl_b32 s56, s32, 1
    s_add_u32 s55, s55, s56           ; phi
    s_cmp_lt_u32 s55, 1920
    s_cselect_b32 s24, s8, s10
    s_cselect_b32 s25, s9, s11
    s_mov_b32 s26, 1966080
    s_cselect_b32 s26, s26, 131072
    s_mov_b32 s27, 0x20000
    s_add_u32 s28, s40, {W2S_OFF}
    s_addc_u32 s29, s41, 0
    s_mov_b32 s30, {2048*1024}
    s_mov_b32 s31, 0x20000""")
    gather_voff(A, vSD, 59)
    for e in range(2):
        A(f"""s_add_u32 s56, s55, {e}
        s_mul_i32 s57, s56, 34953
        s_lshr_b32 s57, s57, 22           ; ns
        s_mul_i32 s58, s57, 120
        s_sub_u32 s58, s56, s58           ; rem
        s_mul_i32 s59, s58, 4370
        s_lshr_b32 s59, s59, 16           ; ks
        s_mul_i32 s33, s59, 15
        s_sub_u32 s58, s58, s33           ; r2
        s_lshl_b32 s33, s58, 1
        s_sub_u32 s34, s33, 15
        s_cmp_lt_u32 s58, 8
        s_cselect_b32 s33, s33, s34       ; tap
        s_lshl_b32 s33, s33, 17
        s_lshl_b32 s59, s59, 14
        s_add_u32 s33, s33, s59
        s_lshl_b32 s57, s57, 5
        s_add_u32 s33, s33, s57
        s_sub_u32 s34, s56, 1920
        s_and_b32 s57, s34, 7
        s_lshl_b32 s57, s57, 14
        s_lshr_b32 s34, s34, 3
        s_lshl_b32 s34, s34, 5
        s_add_u32 s34, s34, s57
        s_cmp_lt_u32 s56, 1920
        s_cselect_b32 s33, s33, s34""")
        for jj in range(8):
            op = "buffer_load_ushort"
            A(f"{op} v{vSide + 8*e + jj}, v{vSD}, s[24:27], s33 offen offset:{jj*512}")
    A(f"s_lshl_b32 s55, s55, 10\nv_lshlrev_b32 v{vSL}, 4, v0")
    for k in range(8): A(f"v_add_u32 v{vXD+8+k}, 512, v{vXD+k}")
    A(f"v_and_b32 v52, 15, v0\nv_lshrrev_b32 v54, 4, v0\nv_lshlrev_b32 v55, 11, v52")
    for a in range(2):
        A(f"v_add_u32 v56, {a}, v52\nv_and_b32 v56, 7, v56\nv_lshlrev_b32 v56, 1, v56\nv_xor_b32 v56, v56, v54")
        for sp in range(2):
            for ks in range(2):
                A(f"v_xor_b32 v57, {8*sp + 4*ks}, v56\nv_lshl_add_u32 v{vVA + 4*sp + 2*ks + a}, v57, 4, v55")
    A(f"""v_bfe_u32 v56, v0, 2, 2          ; r
    v_lshl_add_u32 v57, v54, 3, v56   ; 8g + r
    v_lshlrev_b32 v57, 7, v57
    v_lshrrev_b32 v56, 1, v56
    v_and_b32 v58, 1, v54
    v_lshl_or_b32 v56, v58, 1, v56    ; G
    v_xor_b32 v56, s32, v56
    v_lshl_add_u32 v57, v56, 5, v57
    v_and_b32 v56, 1, v0
    v_lshl_add_u32 v57, v56, 4, v57
    v_bfe_u32 v56, v0, 1, 1
    v_lshl_add_u32 v57, v56, 3, v57
    v_add_u32 v{vWT}, {WB}, v57""")
    for r in range(64): A(f"v_mov_b32 v{vACC+r}, 0")
    Js = [8, 8, 7, 7]; R = 16
    S, N, first, last = conv_groups(R, Js)
    rdpos = {}
    for g, J in enumerate(Js):
        for s in range(R + J - 1):
            rdpos[g, s] = S[g] - 37 + 4*s if s < J else first[g, s] - 18
    buf = ring_alloc({k: (rdpos[k], last[k]) for k in rdpos}, N, NB)
    def frd(g, s):
        ph, ks = g >> 1, g & 1
        return Op(f"ds_read_b128 {v4(vF + 4*buf[g, s])}, v{vVA + 4*(s & 1) + 2*ks + (s >> 4)} offset:{AB[ph] + 256*(s >> 1)}", "lg", ("F", g, s))
    def wtr(g, j, h):
        return Op(f"ds_read_b64_tr_b16 {v2(vW[g & 1] + 4*j + 2*h)}, v{vWT} offset:{(g & 1)*32768 + j*4096 + h*512}", "lg", ("W", g, j, h))
    mf = []
    for g, J in enumerate(Js):
        for m in range(R):
            for j in range(J):
                mf.append(Op(f"v_mfma_f32_16x16x32_bf16 {v4(vACC+4*m)}, {v4(vW[g & 1]+4*j)}, {v4(vF+4*buf[g, m+j])}, {v4(vACC+4*m)}",
                             need=[("F", g, m+j), ("W", g, j, 0), ("W", g, j, 1)], mfma=True))
    ev = []
    chk = []
    for k in rdpos:
        chk.append((len(ev), first[k])); ev.append((rdpos[k], frd(*k)))
    for g, J in enumerate(Js):
        gn = (g + 1) % 4; Jn = Js[gn]
        XB = S[g] + 8
        need = [("WD", gn, j) for j in range(Jn)] + [("W", g, j, h) for j in range(J) for h in range(2)]
        if g & 1: need += [("XD", gn >> 1, k) for k in range(9 - (gn >> 1))]
        if g == 2:
            ev.append((XB - 3, [Op("s_cmp_eq_u32 s53, 3"), Op("s_cselect_b32 s14, 0, s14")]))
            ev.append((XB - 2, Op("s_cselect_b32 s18, 0, s18")))
        ev.append((XB, Op("s_barrier", need=need)))
        dm = []
        if g == 0: dm += xdma(1, False)
        if g == 2: dm += xdma(0, True)
        dm += wdma((g + 2) % 4, g >= 2)
        p = XB + 1
        for grp in dm:
            for o in grp:
                ev.append((p, o)); p += 1
        Send = S[g] + R * J
        p0 = Send - 70
        for j in range(Jn):
            for h in range(2):
                chk.append((len(ev), Send + j)); ev.append((p0 + 3*(2*j + h) + 1, wtr(gn, j, h)))
    side = [Op("s_cmp_lg_u32 s53, 0"), Op("s_cbranch_scc1 L1_noside")]
    txt = []
    for e in range(2):
        for q in range(4): txt.append(f"v_lshl_or_b32 v{vT + 4*e + q}, v{vSide + 8*e + 2*q + 1}, 16, v{vSide + 8*e + 2*q}")
    txt.append(f"buffer_store_dwordx4 {v4(vT)}, v{vSL}, s[28:31], s55 offen")
    txt.append(f"buffer_store_dwordx4 {v4(vT+4)}, v{vSL}, s[28:31], s55 offen offset:1024")
    txt.append("L1_noside:")
    side.append(Op("\n".join(txt), slots=0))
    ev.append((S[1] + 60, side))
    ev.append((N - 6, Op("s_add_u32 s50, s50, 32768")))
    ev.append((N - 5, Op("s_mov_b32 s51, s52")))
    ev.append((N - 4, Op("s_add_u32 s52, s52, 128")))
    ev.append((N - 3, Op("s_add_u32 s53, s53, 1")))
    ev.append((N - 1, [Op("s_cmp_lt_u32 s53, 4"), Op("s_cbranch_scc1 L1_loop")]))
    body, fp = place(mf, ev)
    for k, fu in chk:
        p = ev[k][0]; d = (fp[k] - p) % N
        assert p + d + 6 <= fu, (ev[k][1].text, p, fp[k], fu)
    A(f"s_waitcnt vmcnt({8+16})\ns_barrier")
    stamp(A, 2, stamps)
    for j in range(8):
        for h in range(2): A(wtr(0, j, h).text)
    for k in sorted(rdpos, key=lambda k: rdpos[k]):
        if rdpos[k] < 0: A(frd(*k).text)
    A("s_waitcnt lgkmcnt(0)")
    stamp(A, 3, stamps)
    A(".p2align 6\nL1_loop:")
    for t in insert_waits(body): A(t)
    stamp(A, 4, stamps)
    A("s_waitcnt vmcnt(0) lgkmcnt(0)")
    A(f"""s_lshl_b32 s33, s37, 4
    s_lshl_b32 s34, s35, 2
    s_add_u32 s33, s33, s34
    s_add_u32 s33, s33, s32           ; b*16 + slice
    s_mul_i32 s33, s33, 256000
    s_add_u32 s20, s40, s33
    s_addc_u32 s21, s41, 0
    s_mov_b32 s22, 256000
    s_mov_b32 s23, 0x20000
    s_mov_b32 s42, {f2u(GC1)}
    s_mov_b32 s43, s42
    s_mov_b32 s44, 1.0
    s_mov_b32 s45, 1.0
    v_mov_b32 v{vC0}, {f2u(GC0)}
    v_mov_b32 v{vC0+1}, {f2u(GC0)}
    v_lshrrev_b32 v52, 5, v0
    v_mul_u32_u24 v{vST}, 16000, v52
    v_and_b32 v52, 15, v0
    v_lshl_add_u32 v{vST}, v52, 5, v{vST}
    v_bfe_u32 v53, v0, 4, 1
    v_lshl_add_u32 v{vST}, v53, 4, v{vST}
    v_cmp_eq_u32 vcc, 15, v52
    v_mov_b32 v53, 0x80000000
    s_mul_i32 s46, s38, 250
    v_cndmask_b32 v{vST2}, v{vST}, v53, vcc""")
    for m in range(0, 16, 4):
        tmp = 128 + (m // 4 % 2) * 32; out = tmp + 16
        gelu_pack(A, [vACC + 4*(m+k) for k in range(4)], tmp, out, 42, vC0, 44)
        for pr in range(2):
            mm = m + 2*pr; o = out + 4*pr
            A(f"""s_add_u32 s33, s46, {mm}
            s_and_b32 s34, s33, 15
            s_mul_i32 s34, s34, 16000
            s_lshr_b32 s33, s33, 4
            s_lshl_b32 s33, s33, 5
            s_add_u32 s33, s33, s34
            v_permlane32_swap_b32 v{o}, v{o+2}
            v_permlane32_swap_b32 v{o+1}, v{o+3}
            buffer_store_dwordx4 {v4(o)}, v{vST2 if mm >= 10 else vST}, s[20:23], s33 offen""")
    stamp(A, 5, stamps)
    if stamps: A("s_waitcnt vmcnt(0)")
    stamp(A, 6, stamps)
    stamp_store(A, 7, stamps, 0)
    A("L1_end:\ns_endpgm")
    return kd(name, 256), 135168

def conv2(A, name, stamps=False):
    KS = 17408
    vACC = 32
    vW = [64, 96, 124, 156]
    vF = 184
    NB = 17
    vHD = 2
    vFA = 7
    vWL = 8
    vC0 = 12
    vST = 14
    vSide = 18
    vSD = 26; vSL = 27
    A(entry(name))
    A("s_cmp_ge_u32 s2, 256\ns_cbranch_scc1 L2_end")
    if stamps: A("s_memrealtime s[60:61]")
    stamp(A, 0, stamps)
    A("""s_load_dwordx2 s[40:41], s[0:1], 72
    s_load_dwordx4 s[4:7], s[0:1], 24
    s_load_dwordx2 s[8:9], s[0:1], 48""")
    ids(A)
    A("""s_mul_i32 s42, s38, 250
    s_sub_u32 s42, s42, 7
    s_lshl_b32 s43, s32, 6
    s_mov_b32 s44, 1928
    s_mov_b32 s45, 8000
    s_mov_b32 s46, 256000
    v_mov_b32 v30, 0x80000000""")
    for k in range(5):
        if k < 4: A(f"v_add_u32 v28, s43, v0\nv_add_u32 v28, {256*k}, v28" if k else "v_add_u32 v28, s43, v0")
        else: A("v_add_u32 v28, 1024, v0")
        A(f"""v_cmp_le_u32 vcc, 544, v28
        v_subrev_u32 v29, 544, v28
        v_mov_b32 v31, s46
        v_cndmask_b32 v28, v28, v29, vcc      ; rem
        v_cndmask_b32 v31, 0, v31, vcc        ; slice*256000
        v_mul_u32_u24 v29, s44, v28
        v_lshrrev_b32 v29, 16, v29
        v_mul_u32_u24 v252, 34, v29
        v_sub_u32 v28, v28, v252              ; rem % 34
        v_and_b32 v252, 1, v28
        v_lshl_add_u32 v31, v252, 4, v31
        v_lshrrev_b32 v28, 1, v28             ; qq
        v_lshl_add_u32 v28, v28, 4, v29
        v_add_u32 v28, s42, v28
        v_cmp_gt_u32 vcc, s45, v28
        v_and_b32 v29, 15, v28
        v_mul_u32_u24 v29, 16000, v29
        v_add_u32 v31, v31, v29
        v_lshrrev_b32 v28, 4, v28
        v_lshl_add_u32 v31, v28, 5, v31
        v_cndmask_b32 v{vHD+k}, v30, v31, vcc""")
    A(f"""v_lshlrev_b32 v{vWL}, 4, v0
    v_add_u32 v{vWL+1}, 4096, v{vWL}
    v_add_u32 v{vWL+2}, 8192, v{vWL}
    v_add_u32 v{vWL+3}, 12288, v{vWL}
    s_lshl_b32 s47, s32, 10           ; w*1024
    s_lshl_b32 s33, s35, 2
    s_add_u32 s33, s33, s32           ; ns
    s_mul_i32 s33, s33, 122880
    s_mul_i32 s34, s37, 4096000
    s_waitcnt lgkmcnt(0)
    s_add_u32 s12, s40, s34
    s_addc_u32 s13, s41, 0
    s_mov_b32 s14, 4096000
    s_mov_b32 s15, 0x20000
    s_add_u32 s33, s33, {W2S_OFF}
    s_add_u32 s16, s40, s33
    s_addc_u32 s17, s41, 0
    s_mov_b32 s18, 122880
    s_mov_b32 s19, 0x20000""")
    stamp(A, 1, stamps)
    Js = [8, 7, 8, 7]; R = 8
    fr0 = [0, 8, 15, 23]
    def wld(g, j, so):
        f = fr0[g] + j
        extra = 0
        if f >= 16: f -= 15; extra = 1
        return Op(f"buffer_load_dwordx4 {v4(vW[g] + 4*j)}, v{vWL + f // 4}, s[16:19], {so[extra]} offen offset:{(f % 4)*1024}", "vm", ("W", g, j))
    def hdma(sm0, cm0, sso, tok):
        out = []
        for k in range(4):
            out.append([Op(f"s_add_u32 m0, {sm0}, {cm0 + k*4096}"),
                        Op(f"buffer_load_dwordx4 v{vHD+k}, s[12:15], {sso} offen lds", "vm", (tok, k))])
        return out
    A("s_mov_b32 s50, 0\ns_mov_b32 s51, 15360\ns_mov_b32 s54, 0")
    def emit(seq):
        for grp in seq:
            A(grp[0].text); A("s_nop 0"); A(grp[1].text)
    emit(hdma("s47", 0, "s54", "x"))
    A(f"""s_mul_i32 s33, s32, {KS}
    s_add_u32 m0, s33, 16384
    s_mul_i32 s34, s32, 512000
    buffer_load_dwordx4 v{vHD+4}, s[12:15], s34 offen lds""")
    for j in range(8): A(wld(0, j, ["s50", "s51"]).text)
    for j in range(7): A(wld(1, j, ["s50", "s51"]).text)
    A("s_mov_b32 s54, 512000")
    emit(hdma("s47", KS, "s54", "x"))
    A(f"""s_add_u32 m0, s33, {16384 + 4*KS}
    s_add_u32 s34, s34, {4*512000}
    buffer_load_dwordx4 v{vHD+4}, s[12:15], s34 offen lds""")
    for j in range(8): A(wld(2, j, ["s50", "s51"]).text)
    A("s_mov_b32 s54, 1024000")
    emit(hdma("s47", 2*KS, "s54", "x"))
    gather_voff(A, vSD, 28)
    A(f"v_lshlrev_b32 v{vSL}, 4, v0")
    A(f"""s_mov_b32 s26, 131072
    s_mov_b32 s27, 0x20000
    s_mov_b32 s24, s6
    s_mov_b32 s25, s7
    s_add_u32 s28, s40, {WFS_OFF}
    s_addc_u32 s29, s41, 0
    s_mov_b32 s30, {GE_OFF + 16384 - WFS_OFF}
    s_mov_b32 s31, 0x20000
    s_add_u32 s84, s40, {W2S_OFF + 1920*1024}
    s_addc_u32 s85, s41, 0
    s_mov_b32 s86, 131072
    s_mov_b32 s87, 0x20000
    s_mov_b32 s80, s4
    s_mov_b32 s81, s5
    s_mov_b32 s82, 8192
    s_mov_b32 s83, 0x20000
    s_cmp_eq_u32 s32, 1
    s_cbranch_scc0 L2_nog""")
    A(f"""s_and_b32 s33, s2, 7              ; ks
    s_lshl_b32 s33, s33, 14
    s_bfe_u32 s34, s2, 0x20005        ; w
    s_lshl_b32 s34, s34, 7
    s_add_u32 s33, s33, s34
    s_bfe_u32 s34, s2, 0x20003        ; sub
    v_lshrrev_b32 v28, 4, v0
    v_lshlrev_b32 v28, 12, v28
    v_and_b32 v29, 15, v0
    s_cmp_lt_u32 s2, 128
    s_cbranch_scc0 L2_wo
    s_lshr_b32 s55, s34, 1            ; kk
    s_lshl_b32 s55, s55, 6
    s_and_b32 s34, s34, 1             ; AB
    s_lshl_b32 s34, s34, 3
    s_add_u32 s34, s34, s55
    s_add_u32 s33, s33, s34
    v_lshrrev_b32 v31, 2, v29
    v_lshl_add_u32 v28, v31, 4, v28
    v_and_b32 v31, 3, v29
    v_lshl_add_u32 v28, v31, 1, v28
    s_branch L2_gath
    L2_wo:
    s_mov_b32 s24, s8
    s_mov_b32 s25, s9
    s_lshl_b32 s34, s34, 1
    s_add_u32 s33, s33, s34
    v_lshl_add_u32 v28, v29, 3, v28
    L2_gath:""")
    for jj in range(8):
        op = "buffer_load_ushort"
        A(f"{op} v{vSide + jj}, v28, s[24:27], s33 offen offset:{jj*512}")
    A(f"""L2_nog:
    s_cmp_eq_u32 s32, 0
    s_cselect_b32 s56, s2, 999
    s_cmp_lt_u32 s56, 16
    s_cbranch_scc0 L2_noge
    s_lshl_b32 s33, s2, 13
    v_and_b32 v28, 15, v0
    v_lshlrev_b32 v28, 9, v28
    v_lshrrev_b32 v29, 4, v0
    v_lshl_add_u32 v28, v29, 4, v28""")
    for ks in range(8):
        A(f"buffer_load_dwordx4 a[{4*ks}:{4*ks+3}], v{vWL + ks // 4}, s[84:87], s33 offen offset:{(ks % 4)*1024}")
        A(f"buffer_load_dwordx4 a[{32+4*ks}:{35+4*ks}], v28, s[80:83], 0 offen offset:{ks*64}")
    A("L2_noge:")
    A(f"""v_and_b32 v28, 15, v0
    v_lshlrev_b32 v28, 5, v28
    v_bfe_u32 v29, v0, 4, 1
    v_lshl_add_u32 v28, v29, 4, v28
    v_lshrrev_b32 v29, 5, v0
    v_mul_u32_u24 v29, 8704, v29
    v_add_u32 v{vFA}, v28, v29""")
    for r in range(32): A(f"v_mov_b32 v{vACC+r}, 0")
    S, N, first, last = conv_groups(R, Js)
    rdpos = {}
    for g, J in enumerate(Js):
        for s in range(R + J - 1):
            rdpos[g, s] = S[g] - 30 + 3*s if s < J else first[g, s] - 16
    buf = ring_alloc({k: (rdpos[k], last[k]) for k in rdpos}, N, NB)
    UPD = N - 34
    def frd(g, s, pro=False):
        ph = g & 1; ks = g >> 1
        z = 2*s + ph
        off = ks * KS + (z & 15) * 544 + (z >> 4) * 32
        if not pro and rdpos[g, s] >= 0 and rdpos[g, s] > UPD: off -= 2*KS; assert off >= 0
        return Op(f"ds_read_b128 {v4(vF + 4*buf[g, s])}, v{vFA} offset:{off}", "lg", ("F", g, s))
    mf = []
    for g, J in enumerate(Js):
        for m in range(R):
            for j in range(J):
                mf.append(Op(f"v_mfma_f32_16x16x32_bf16 {v4(vACC+4*m)}, {v4(vW[g]+4*j)}, {v4(vF+4*buf[g, m+j])}, {v4(vACC+4*m)}",
                             need=[("F", g, m+j), ("W", g, j)], mfma=True))
    ev = []; chk = []
    vFB = 17
    for k in rdpos:
        g, s = k
        if rdpos[k] >= 0 and rdpos[k] > UPD:
            ph = g & 1; ks = g >> 1; z = 2*s + ph
            op = Op(f"ds_read_b128 {v4(vF + 4*buf[g, s])}, v{vFB} offset:{ks*KS + (z & 15)*544 + (z >> 4)*32}", "lg", ("F", g, s))
        else:
            op = frd(g, s, pro=True)
        chk.append((len(ev), first[k])); ev.append((rdpos[k], op))
    ev.append((UPD, [Op(f"v_mov_b32 v{vFB}, v{vFA}"), Op(f"v_add_u32 v{vFA}, {2*KS}, v{vFA}")]))
    for g, J in enumerate(Js):
        Send = S[g] + R*J
        for j in range(J):
            if g < 3: ev.append((Send + 1 + 5*j, wld(g, j, ["s52", "s53"])))
            else:     ev.append((1 + 5*j, wld(g, j, ["s50", "s51"])))
    for half in range(2):
        XB = S[2*half + 2] - 32 if half == 0 else N - 32
        ev.append((XB, Op("s_barrier", need=[(("HD", half), k) for k in range(4)])))
        p = XB + 2
        for grp in hdma("s57" if half == 0 else "s48", 0, "s58" if half == 0 else "s59", ("HD", half)):
            ev.append((p, grp[0])); ev.append((p + 1, grp[1])); p += 4
    ev.append((N - 12, Op("s_mov_b32 s50, s52")))
    ev.append((N - 11, Op("s_mov_b32 s51, s53")))
    ev.append((N - 10, Op("s_add_u32 s52, s52, 30720")))
    ev.append((N - 9, Op("s_add_u32 s53, s53, 30720")))
    ev.append((N - 13, [Op(f"s_add_u32 s57, s57, {2*KS}"), Op("s_min_u32 s57, s57, s55")]))
    ev.append((N - 8, [Op(f"s_add_u32 s48, s48, {2*KS}"), Op("s_min_u32 s48, s48, s55")]))
    ev.append((N - 7, Op("s_add_u32 s58, s58, 1024000")))
    ev.append((N - 6, Op("s_add_u32 s59, s59, 1024000")))
    ev.append((N - 5, Op("s_add_u32 s49, s49, 1")))
    ev.append((N - 1, [Op("s_cmp_lt_u32 s49, 4"), Op("s_cbranch_scc1 L2_loop")]))
    body, fp = place(mf, ev)
    for k, fu in chk:
        p = ev[k][0]; d = (fp[k] - p) % N
        assert p + d + 6 <= fu, (ev[k][1].text, p, fp[k], fu)
    A(f"""s_mov_b32 s52, 30720
    s_mov_b32 s53, {30720+15360}
    s_add_u32 s57, s47, {3*KS}
    s_add_u32 s48, s47, {4*KS}
    s_add_u32 s55, s47, {8*KS}
    s_mov_b32 s58, {3*512000}
    s_mov_b32 s59, {4*512000}
    s_mov_b32 s49, 0""")
    A("s_waitcnt vmcnt(12)\ns_barrier")
    stamp(A, 2, stamps)
    for k in sorted(rdpos, key=lambda k: rdpos[k]):
        if rdpos[k] < 0: A(frd(*k, pro=True).text)
    A("s_waitcnt vmcnt(0) lgkmcnt(0)")
    stamp(A, 3, stamps)
    A(".p2align 6\nL2_loop:")
    for t in insert_waits(body): A(t)
    stamp(A, 4, stamps)
    A("s_waitcnt vmcnt(0) lgkmcnt(0)")
    A(f"""s_lshl_b32 s33, s35, 2
    s_add_u32 s33, s33, s32           ; slice
    s_mul_i32 s33, s33, 256000
    s_add_u32 s33, s33, {F_OFF}
    s_add_u32 s20, s40, s33
    s_addc_u32 s21, s41, 0
    s_mov_b32 s22, 256000
    s_mov_b32 s23, 0x20000
    s_mov_b32 s42, {f2u(GC1)}
    s_mov_b32 s43, s42
    s_mov_b32 s44, 1.0
    s_mov_b32 s45, 1.0
    v_mov_b32 v{vC0}, {f2u(GC0)}
    v_mov_b32 v{vC0+1}, {f2u(GC0)}
    v_lshrrev_b32 v28, 5, v0
    v_and_b32 v29, 15, v0
    v_lshl_add_u32 v28, v29, 3, v28   ; 8i + hi
    v_lshlrev_b32 v{vST}, 5, v28
    v_bfe_u32 v29, v0, 4, 1
    v_lshl_add_u32 v{vST}, v29, 4, v{vST}
    v_cmp_lt_u32 vcc, 120, v28
    s_mul_i32 s46, s36, {125*32}
    s_nop 0
    v_cndmask_b32 v{vST+1}, v{vST}, v30, vcc
    v_cmp_le_u32 vcc, 120, v28
    s_nop 1
    v_cndmask_b32 v{vST+2}, v{vST}, v30, vcc""")
    for m in range(0, 8, 4):
        tmp = 64 + (m // 4) * 32; out = tmp + 16
        gelu_pack(A, [vACC + 4*(m+k) for k in range(4)], tmp, out, 42, vC0, 44)
        for pr in range(2):
            mm = m + 2*pr; o = out + 4*pr
            vs = vST + (0 if mm < 4 else 1 if mm == 4 else 2)
            A(f"""s_nop 1
            v_permlane32_swap_b32 v{o}, v{o+2}
            v_permlane32_swap_b32 v{o+1}, v{o+3}
            buffer_store_dwordx4 {v4(o)}, v{vs}, s[20:23], s46 offen offset:{mm*32}""")
    A(f"""s_cmp_eq_u32 s32, 1
    s_cbranch_scc0 L2_nog2""")
    for q in range(4): A(f"v_lshl_or_b32 v{128+q}, v{vSide+2*q+1}, 16, v{vSide+2*q}")
    A(f"""s_lshl_b32 s33, s2, 10
    buffer_store_dwordx4 v[128:131], v{vSL}, s[28:31], s33 offen
    L2_nog2:
    s_cmp_lt_u32 s56, 16
    s_cbranch_scc0 L2_noge2""")
    for ks in range(8):
        A(f"v_mfma_f32_16x16x32_bf16 v[132:135], a[{4*ks}:{4*ks+3}], a[{32+4*ks}:{35+4*ks}], {'v[132:135]' if ks else 0}")
    A(f"""v_and_b32 v28, 15, v0
    v_lshlrev_b32 v28, 10, v28
    v_bfe_u32 v29, v0, 4, 1
    v_lshl_add_u32 v28, v29, 5, v28
    v_lshrrev_b32 v29, 5, v0
    v_lshl_add_u32 v28, v29, 4, v28
    s_lshl_b32 s33, s2, 6
    s_add_u32 s33, s33, {GE_OFF - WFS_OFF}
    s_nop 4
    buffer_store_dwordx4 v[132:135], v28, s[28:31], s33 offen
    L2_noge2:""")
    stamp(A, 5, stamps)
    if stamps: A("s_waitcnt vmcnt(0)")
    stamp(A, 6, stamps)
    stamp_store(A, 7, stamps, 1)
    A("L2_end:\ns_endpgm")
    return kd(name, 320, accum=256), 9*KS

def joint(A, name, stamps=False):
    GEL = 32768
    vFE = 32
    vACC = 64
    vJ = 96
    vG = 160
    vT = 176
    vP = 208
    vO = 224
    vL = 2; vFL = 3; vJW = 4; vGA = 5; vST = 6
    C2 = 2 * LOG2E
    A(entry(name))
    A("s_cmp_ge_u32 s2, 256\ns_cbranch_scc1 L3_end")
    if stamps: A("s_memrealtime s[60:61]")
    stamp(A, 0, stamps)
    A("""s_load_dwordx2 s[40:41], s[0:1], 72
    s_load_dwordx2 s[4:5], s[0:1], 56""")
    ids(A)
    A(f"""s_mul_i32 s42, s36, 125
    s_lshl_b32 s43, s35, 5
    s_add_u32 s42, s42, s43
    s_sub_u32 s43, 125, s43
    v_lshlrev_b32 v{vL}, 4, v0
    v_and_b32 v20, 15, v0
    v_lshrrev_b32 v21, 4, v0
    v_lshlrev_b32 v{vFL}, 5, v20
    v_and_b32 v22, 1, v21
    v_lshl_add_u32 v{vFL}, v22, 4, v{vFL}
    v_lshrrev_b32 v22, 1, v21
    s_mov_b32 s44, 256000
    v_mul_u32_u24 v22, s44, v22
    v_add_u32 v{vFL}, v22, v{vFL}
    s_lshl_b32 s45, s32, 15           ; w*32 KB
    s_lshl_b32 s46, s42, 5            ; t0*32
    s_lshl_b32 s47, s37, 13           ; b*8 KB
    s_lshl_b32 s48, s32, 11
    s_waitcnt lgkmcnt(0)
    s_add_u32 s12, s40, {F_OFF}
    s_addc_u32 s13, s41, 0
    s_mov_b32 s14, 4096000
    s_mov_b32 s15, 0x20000
    s_add_u32 s16, s40, {WFS_OFF}
    s_addc_u32 s17, s41, 0
    s_mov_b32 s18, {GE_OFF + 16384 - WFS_OFF}
    s_mov_b32 s19, 0x20000
    s_mov_b32 s20, s4
    s_mov_b32 s21, s5
    s_mov_b32 s22, 32768000
    s_mov_b32 s23, 0x20000""")
    stamp(A, 1, stamps)
    A(f"""s_add_u32 s49, s47, s48
    s_add_u32 s49, s49, {GE_OFF - WFS_OFF}
    s_add_u32 m0, s48, {GEL}
    s_nop 0
    buffer_load_dwordx4 v{vL}, s[16:19], s49 offen lds
    buffer_load_dwordx4 v{vL}, s[16:19], s49 offen offset:1024 lds""")
    vFF = 96
    def wf_reg(sub, ks): return f"a[{128 + (sub*8 + ks)*4}:{128 + (sub*8 + ks)*4 + 3}]"
    for ks in range(8):
        A(f"s_add_u32 s49, s46, {ks*512000}")
        for tt in range(2): A(f"buffer_load_dwordx4 {v4(vFF + 8*ks + 4*tt)}, v{vFL}, s[12:15], s49 offen offset:{512*tt}")
        for sub in range(4):
            A(f"s_add_u32 s50, s45, {sub*8192 + (ks // 4)*4096}")
            A(f"buffer_load_dwordx4 {wf_reg(sub, ks)}, v{vL}, s[16:19], s50 offen offset:{(ks % 4)*1024}")
    nwo = 0
    wo_loads = []
    for vt in range(4):
        for ks in range(8):
            wo_loads.append((f"s_add_u32 s50, s45, {131072 + vt*8192 + (ks // 4)*4096}",
                             f"buffer_load_dwordx4 a[{(vt*8+ks)*4}:{(vt*8+ks)*4+3}], v{vL}, s[16:19], s50 offen offset:{(ks % 4)*1024}"))
    for a, b in wo_loads[:12]: A(a); A(b)
    A(f"""s_lshl_b32 s49, s32, 12
    v_add_u32 v{vJW}, s49, v{vL}
    s_lshl_b32 s49, s32, 8
    v_lshlrev_b32 v{vGA}, 5, v21
    v_add_u32 v{vGA}, s49, v{vGA}
    v_add_u32 v{vGA}, {GEL}, v{vGA}
    s_lshl_b32 s49, s32, 7
    v_lshlrev_b32 v22, 3, v20
    v_add_u32 v22, s49, v22           ; w*128 + n*8
    v_lshlrev_b32 v23, 2, v21         ; 4 gD
    v_mov_b32 v25, 0x80000000
    s_lshl_b32 s51, s42, 12           ; t0*4096
    s_mov_b32 s52, {f2u(C2)}""")
    for tt in range(2):
        for r in range(4):
            A(f"""v_add_u32 v24, {16*tt + r}, v23
            v_cmp_gt_u32 vcc, s43, v24
            v_lshl_add_u32 v24, v24, 12, v22
            s_nop 0
            v_cndmask_b32 v{vST + 4*tt + r}, v25, v24, vcc""")
    for ks in range(8):
        A(f"s_waitcnt vmcnt({12 + 6*(7-ks) + (min(20, 3*ks))})")
        for sub in range(4):
            for tt in range(2):
                d = vFE + 8*sub + 4*tt
                A(f"v_mfma_f32_16x16x32_bf16 {v4(d)}, {wf_reg(sub, ks)}, {v4(vFF + 8*ks + 4*tt)}, {v4(d) if ks else 0}")
        for a, b in wo_loads[12 + 3*ks: min(32, 12 + 3*ks + 3)]: A(a); A(b)
    stamp(A, 2, stamps)
    A("s_barrier")
    def gread(u_off):
        return [Op(f"ds_read_b128 {v4(vG + 8*kk + 4*h)}, v{vGA} offset:{u_off + kk*128 + h*16}", "lg", ("G", kk, h)) for kk in range(2) for h in range(2)]
    for o in gread(0): A(o.text)
    A("s_nop 4")
    for r in range(32): A(f"v_mul_f32 v{vFE+r}, s52, v{vFE+r}")
    def jops():
        ops = []
        for kk in range(2):
            for tt in range(2):
                t = vT + 8*((2*kk + tt) % 4)
                el = [(vFE + 8*(2*kk + ab) + 4*tt + r, vG + 8*kk + 4*ab + r, t + 4*ab + r) for ab in range(2) for r in range(4)]
                for k, (x, gq, tq) in enumerate(el):
                    ops.append(Op(f"v_fma_f32 v{tq}, v{gq}, s52, v{x}", need=[("G", kk, k // 4)]))
                for x, gq, tq in el: ops.append(Op(f"v_exp_f32 v{tq}, v{tq}", slots=2))
                for x, gq, tq in el: ops.append(Op(f"v_add_f32 v{tq}, 1.0, v{tq}"))
                for x, gq, tq in el: ops.append(Op(f"v_rcp_f32 v{tq}, v{tq}", slots=2))
                for x, gq, tq in el: ops.append(Op(f"v_fma_f32 v{tq}, v{tq}, -2.0, 1.0"))
                p = vP + 4*(2*kk + tt)
                for q in range(4): ops.append(Op(f"v_cvt_pk_bf16_f32 v{p+q}, v{t+2*q}, v{t+2*q+1}"))
                ops.append(("W", kk, tt, p))
        return ops
    def jwrite(kk, tt, p, par):
        return Op(f"ds_write_b128 v{vJW}, {v4(p)} offset:{par*16384 + kk*2048 + tt*1024}", "lg", ("JW", kk, tt))
    A("s_waitcnt lgkmcnt(0)")
    for o in jops():
        if isinstance(o, tuple): A(jwrite(o[1], o[2], o[3], 0).text)
        else: A(o.text)
    for o in gread(1024): A(o.text)
    A("s_waitcnt vmcnt(0) lgkmcnt(0)\ns_barrier")
    def jread(tt, ks, par):
        return Op(f"ds_read_b128 {v4(vJ + 32*tt + 4*ks)}, v{vL} offset:{par*16384 + ks*2048 + tt*1024}", "lg", ("J", tt, ks))
    for ks in range(8): A(jread(0, ks, 0).text)
    A(f"v_add_u32 v{vGA}, 2048, v{vGA}")
    A("s_mov_b32 s53, 0\ns_sub_u32 s54, s51, 512")
    stamp(A, 3, stamps)
    mf = []; ev = []
    def outops(tt, so):
        ops = []
        for r in range(4):
            o = vO + 8*tt + 2*r
            ops.append(Op(f"v_cvt_pk_bf16_f32 v{o}, v{vACC + 16*tt + r}, v{vACC + 16*tt + 4 + r}"))
            ops.append(Op(f"v_cvt_pk_bf16_f32 v{o+1}, v{vACC + 16*tt + 8 + r}, v{vACC + 16*tt + 12 + r}"))
            ops.append(Op(f"buffer_store_dwordx2 {v2(o)}, v{vST + 4*tt + r}, s[20:23], {so} offen", "vm"))
        return ops
    for par in range(2):
        S0 = 64*par
        for tt in range(2):
            for vt in range(4):
                for ks in range(8):
                    d = vACC + 16*tt + 4*vt
                    mf.append(Op(f"v_mfma_f32_16x16x32_bf16 {v4(d)}, {v4(vJ + 32*tt + 4*ks)}, a[{(vt*8+ks)*4}:{(vt*8+ks)*4+3}], {v4(d) if ks else 0}",
                                 need=[("J", tt, ks)], mfma=True))
        for ks in range(8): ev.append((S0 + 4 + 2*ks, jread(1, ks, par)))
        p = S0 + 3
        for o in outops(1, "s54"): ev.append((p, o)); p += 1
        ev.append((p, Op("s_add_u32 s54, s54, 512")))
        p = S0 + 35
        for o in outops(0, "s54"): ev.append((p, o)); p += 1
        jo = jops(); n = len(jo)
        for k, o in enumerate(jo):
            pos = S0 + (k * 50) // n
            if isinstance(o, tuple): ev.append((pos, jwrite(o[1], o[2], o[3], 1 - par)))
            else: ev.append((pos, o))
        for o in gread(0 if par == 0 else 1024): ev.append((S0 + 51, o))
        if par == 1: ev.append((S0 + 53, Op(f"v_add_u32 v{vGA}, 2048, v{vGA}")))
        ev.append((S0 + 52, Op("s_barrier", need=[("JW", kk, tt) for kk in range(2) for tt in range(2)] + [("J", 1, 7)])))
        for ks in range(8): ev.append((S0 + 53 + ks, jread(0, ks, 1 - par)))
    ev.append((125, Op("s_add_u32 s53, s53, 1")))
    ev.append((127, [Op("s_cmp_lt_u32 s53, 4"), Op("s_cbranch_scc1 L3_loop")]))
    body, fp = place(mf, ev, cap=99)
    A("s_mov_b32 s22, 0")
    A(".p2align 6\nL3_loop:")
    lines = insert_waits(body)
    first_done = False
    for t in lines:
        A(t)
        if t.startswith("s_add_u32 s54") and not first_done:
            A("s_mov_b32 s22, 32768000"); first_done = True
    A("s_nop 7")
    for o in outops(1, "s54"): A(o.text)
    stamp(A, 4, stamps)
    if stamps: A("s_waitcnt vmcnt(0)")
    stamp(A, 5, stamps)
    stamp_store(A, 6, stamps, 2)
    A("L3_end:\ns_endpgm")
    return kd(name, 512, accum=256), 32768 + 8192 + 4096

def build(stamps=False, only=None):
    A = Asm()
    kds = []
    ks = [("conv1_kernel", conv1), ("conv2_kernel", conv2), ("joint_kernel", joint)]
    hdr = []
    for name, fn in ks:
        d, lds = fn(A, name, stamps)
        kds.append(d)
        hdr.append(f"; @launch kernel={name} grid=(256,1,1) block=(256,1,1) lds={lds}")
    from hazard import fix_and_check
    A.l = fix_and_check(A.l)
    return "\n".join(hdr) + "\n" + HEAD + A.text() + "".join(kds)

if __name__ == "__main__":
    out = sys.argv[1] if len(sys.argv) > 1 else "standalone__seq2seq_rnn_t_joint__speech.s"
    open(out, "w").write(build(stamps=len(sys.argv) > 2))
```
